```python
import torch

def _softmax(x, axis=-1):
    return torch.softmax(x, dim=axis)
def _gelu(x):
    return torch.nn.functional.gelu(x, approximate="tanh")
def _silu(x):
    return torch.nn.functional.silu(x)
def _sigmoid(x):
    return torch.sigmoid(x)
def _layernorm(x, axis=-1, eps=1e-5):
    m = x.mean(dim=axis, keepdim=True)
    v = x.var(dim=axis, keepdim=True, unbiased=False)
    return (x - m) / torch.sqrt(v + eps)
def _scatter_add(tgt, idx, src, axis=0):
    return tgt.clone().index_add_(axis, idx, src)
def _segment_sum(src, seg, n):
    out = torch.zeros((n,) + src.shape[1:], dtype=src.dtype)
    return out.index_add_(0, seg, src)
def _pad(x, pw):
    flat = tuple(v for pair in reversed(pw) for v in pair)
    return torch.nn.functional.pad(x, flat)

kernel_name = 'standalone__gqa_softmax__sampling'

def setup_inputs():

    _w = (lambda a: (lambda t: t.to(torch.bfloat16) if t.is_floating_point() else t)(torch.as_tensor(a)))
    B, Hq, Hkv, Sq, Sk, D = 16, 32, 8, 16, 4096, 128
    return {
        "q": _w((lambda *s: torch.randn(*s, dtype=torch.bfloat16) * 0.8)(B, Hq, Sq, D)),
        "k": _w((lambda *s: torch.randn(*s, dtype=torch.bfloat16) * 0.8)(B, Hkv, Sk, D)),
        "v": _w((lambda *s: torch.randn(*s, dtype=torch.bfloat16) * 0.05)(B, Hkv, Sk, D)),
    }

def reference(q, k, v):
    B, Hq, Sq, D = q.shape
    Hkv = k.shape[1]
    rep = Hq // Hkv
    k = (lambda x, n, axis: torch.repeat_interleave(x, n, dim=axis))(k, rep, axis=1)
    v = (lambda x, n, axis: torch.repeat_interleave(x, n, dim=axis))(v, rep, axis=1)
    scale = D ** -0.5
    scores = torch.einsum("bhqd,bhkd->bhqk", q, k) * scale
    p = _softmax(scores, axis=-1)
    return torch.einsum("bhqk,bhkd->bhqd", p, v)
```

```python
import sys
from asmlib import build, descriptor, HEAD, kernel_text

STAMP_OFF = 384 << 20
C_SCALE = 0x3e029519
import struct, math
C_SCALE = struct.unpack('<I', struct.pack('<f', (128 ** -0.5) * math.log2(math.e)))[0]

vQ, vS, vP, vO, vL, vONE = 16, 32, 48, 56, 88, 92
vKC, vVC, vKA, vVA = 96, 100, 108, 112
vKF, vVF = 128, 192
vM, vMC, vMN, vT0, vT1, vAL = 8, 9, 10, 11, 12, 14

def r(base, n=1):
    return f"v{base}" if n == 1 else f"v[{base}:{base+n-1}]"

class Emit:
    def __init__(self):
        self.L = []
        self.ds = []
    def __call__(self, s):
        self.L.append(s)
    def dsop(self, s, tag):
        if len(self.ds) >= 15:
            self.L.append("s_waitcnt lgkmcnt(14)")
            self.ds = self.ds[-14:]
        self.L.append(s)
        self.ds.append(tag)
    def need(self, *tags):
        idx = max((i for i, t in enumerate(self.ds) if t in tags), default=-1)
        if idx >= 0:
            n = len(self.ds) - 1 - idx
            n = min(n, 15)
            self.L.append(f"s_waitcnt lgkmcnt({n})")
            self.ds = self.ds[len(self.ds) - n:] if n else []
    def text(self):
        return "\n".join(("" if s.endswith(":") else "    ") + s for s in self.L)

def k_read(e, kb, st):
    e.dsop(f"ds_read_b128 {r(vKF + (kb*4+st)*4, 4)}, {r(vKA+st)} offset:{kb*4096}", ('K', kb, st))

def v_read(e, s, db, half):
    e.dsop(f"ds_read_b64_tr_b16 {r(vVF + (s*8+db)*4 + half*2, 2)}, {r(vVA+db)} offset:{(2*s+half)*4096}", ('V', s, db, half))

def qk_mfma(e, kb, st):
    e.need(('K', kb, st))
    c = "0" if st == 0 else r(vS + kb*4, 4)
    e(f"v_mfma_f32_16x16x32_bf16 {r(vS+kb*4,4)}, {r(vKF+(kb*4+st)*4,4)}, {r(vQ+st*4,4)}, {c}")

def pv_mfma(e, s, db):
    e.need(('V', s, db, 0), ('V', s, db, 1))
    e(f"v_mfma_f32_16x16x32_bf16 {r(vO+db*4,4)}, {r(vVF+(s*8+db)*4,4)}, {r(vP+s*4,4)}, {r(vO+db*4,4)}")

def l_mfma(e, s):
    e(f"v_mfma_f32_16x16x32_bf16 {r(vL,4)}, {r(vONE,4)}, {r(vP+s*4,4)}, {r(vL,4)}")

def softmax_ops(first):
    G = []
    if first:
        G.append([f"v_max3_f32 {r(vT0)}, {r(vS)}, {r(vS+1)}, {r(vS+2)}"])
        G.append([f"v_max_f32 {r(vT0)}, {r(vT0)}, {r(vS+3)}"])
        rest = list(range(4, 16))
    else:
        G.append([f"v_max3_f32 {r(vT0)}, {r(vS)}, {r(vS+1)}, {r(vM)}"])
        rest = list(range(2, 16))
    for i in range(0, len(rest), 2):
        G.append([f"v_max3_f32 {r(vT0)}, {r(vS+rest[i])}, {r(vS+rest[i+1])}, {r(vT0)}"])
    G.append([f"v_mov_b32 {r(vT1)}, {r(vT0)}", "s_nop 1",
              f"v_permlane32_swap_b32 {r(vT0)}, {r(vT1)}",
              f"v_max_f32 {r(vT0)}, {r(vT0)}, {r(vT1)}"])
    G.append([f"v_mov_b32 {r(vT1)}, {r(vT0)}", "s_nop 1",
              f"v_permlane16_swap_b32 {r(vT0)}, {r(vT1)}",
              f"v_max_f32 {r(vMN)}, {r(vT0)}, {r(vT1)}"])
    if first:
        G.append([f"v_mul_f32 {r(vMC)}, s40, {r(vMN)}", f"v_mov_b32 {r(vM)}, {r(vMN)}"])
    else:
        G.append([f"v_mul_f32 {r(vT0)}, s40, {r(vMN)}",
                  f"v_cmp_gt_f32 vcc, {r(vMN)}, {r(vM)}",
                  f"v_sub_f32 {r(vAL)}, {r(vMC)}, {r(vT0)}",
                  f"v_mov_b32 {r(vMC)}, {r(vT0)}"])
        G.append([f"v_exp_f32 {r(vAL)}, {r(vAL)}", f"v_mov_b32 {r(vM)}, {r(vMN)}"])
    for i in range(16):
        G.append([f"v_fma_f32 {r(vS+i)}, {r(vS+i)}, s40, -{r(vMC)}"])
        if i >= 1:
            G[-1].append(f"v_exp_f32 {r(vS+i-1)}, {r(vS+i-1)}")
    G.append([f"v_exp_f32 {r(vS+15)}, {r(vS+15)}"])
    return G

def pack_p(e):
    for i in range(8):
        e(f"v_cvt_pk_bf16_f32 {r(vP+i)}, {r(vS+2*i)}, {r(vS+2*i+1)}")

def next_addr(e, k=True, v=True):
    if k:
        for i in range(4):
            e(f"v_add_u32 {r(vKA+i)}, s41, {r(vKC+i)}")
        e("s_add_u32 s41, s41, 0x4000")
        e("s_and_b32 s41, s41, 0xffff")
    if v:
        for i in range(8):
            e(f"v_add_u32 {r(vVA+i)}, s42, {r(vVC+i)}")
        e("s_add_u32 s42, s42, 0x4000")
        e("s_and_b32 s42, s42, 0xffff")

def stamp(e, idx, on):
    if on:
        e(f"s_memrealtime s[{64+2*idx}:{65+2*idx}]")
        e("s_waitcnt lgkmcnt(0)")
        e.ds = []

def gen(name, nA=30, depth=20, grp=4, flags='nt', stamps=False, apar=0, oflags=''):
    nB = 64 - nA
    e = Emit()
    lab = lambda s: f"{name}_{s}"
    e("s_cmp_ge_u32 s2, 256")
    e(f"s_cbranch_scc1 {lab('done')}")
    if stamps:
        e("s_memrealtime s[64:65]")
    e("s_load_dwordx4 s[4:7], s[0:1], 8")
    e("v_lshrrev_b32 v1, 6, v0")
    e("v_and_b32 v0, 63, v0")
    e("v_readfirstlane_b32 s20, v1")
    e("s_lshr_b32 s21, s2, 1")
    e("s_and_b32 s22, s2, 1")
    if apar:
        e("s_xor_b32 s22, s22, 1")
    e("s_cmp_eq_u32 s22, 0")
    e(f"s_cselect_b32 s23, {nA}, {nB}")
    e("s_cmp_lg_u32 s20, 0")
    e(f"s_cbranch_scc1 {lab('compute')}")
    e("v_lshrrev_b32 v1, 4, v0")
    e("v_and_b32 v2, 15, v0")
    e("v_xor_b32 v3, v2, v1")
    e("v_lshlrev_b32 v3, 4, v3")
    e("v_lshl_add_u32 v4, v1, 8, v3")
    e("v_xor_b32 v5, 64, v4")
    e("v_xor_b32 v6, 0x80, v4")
    e("v_xor_b32 v7, 0xc0, v4")
    e("v_lshlrev_b32 v3, 1, v1")
    e("v_xor_b32 v3, v2, v3")
    e("v_lshlrev_b32 v3, 4, v3")
    e("v_lshl_add_u32 v8, v1, 8, v3")
    e("v_xor_b32 v9, 0x80, v8")
    e("s_lshl_b32 s24, s21, 20")
    e(f"s_mul_i32 s25, s22, {nA*16384}")
    e("s_mov_b32 s26, s25")
    e("s_mov_b32 s27, 0")
    e("s_mov_b32 s28, 0x10000")
    e("s_mov_b32 s10, 0x100000")
    e("s_mov_b32 s11, 0x20000")
    e("s_mov_b32 s14, 0x100000")
    e("s_mov_b32 s15, 0x20000")
    e("s_sub_u32 s29, s23, 1")
    e("s_waitcnt lgkmcnt(0)")
    e("s_add_u32 s8, s4, s24")
    e("s_addc_u32 s9, s5, 0")
    e("s_and_b32 s9, s9, 0xffff")
    e("s_add_u32 s12, s6, s24")
    e("s_addc_u32 s13, s7, 0")
    e("s_and_b32 s13, s13, 0xffff")

    def unit(kind, n0, bar_at, paced=True):
        for j in range(16):
            n = n0 + j
            if paced and n % grp == 0:
                e(f"s_waitcnt vmcnt({depth-grp})")
            if j % 4 == 0:
                ring, off = ("s27", "s25") if kind == 'K' else ("s28", "s26")
                e(f"s_add_u32 m0, {ring}, {j*1024}")
                e(f"s_add_u32 s33, {off}, {j*1024}")
            if kind == 'K':
                e(f"buffer_load_dwordx4 v{4+j%4}, s[8:11], s33 offen offset:{(j%4)*1024} {flags} lds")
            else:
                e(f"buffer_load_dwordx4 v{8+j%2}, s[12:15], s33 offen offset:{(j%4)*1024} {flags} lds")
            if bar_at is not None and n == bar_at:
                e("s_barrier")
        if kind == 'K':
            e("s_add_u32 s25, s25, 0x4000")
            e("s_add_u32 s27, s27, 0x4000")
            e("s_and_b32 s27, s27, 0xffff")
        else:
            e("s_add_u32 s26, s26, 0x4000")
            e("s_add_u32 s28, s28, 0x4000")
            e("s_and_b32 s28, s28, 0xffff")
            e("s_or_b32 s28, s28, 0x10000")

    assert 16 <= depth <= 32 + 0 and depth % grp == 0
    p = depth - grp
    bar = p + grp - 1
    unit('K', 0, None, paced=False)
    e(f"{lab('ld_loop')}:")
    unit('K', 0, bar)
    unit('V', 16, bar)
    e("s_sub_u32 s29, s29, 1")
    e("s_cmp_lg_u32 s29, 0")
    e(f"s_cbranch_scc1 {lab('ld_loop')}")
    unit('V', 0, bar if bar < 16 else None)
    if bar >= 16:
        e("s_waitcnt vmcnt(16)")
        e("s_barrier")
    e("s_waitcnt vmcnt(0)")
    e("s_barrier")
    e("s_endpgm")

    e(f"{lab('compute')}:")
    e("s_load_dwordx2 s[34:35], s[0:1], 0")
    e("s_load_dwordx4 s[16:19], s[0:1], 24")
    e("s_load_dwordx2 s[30:31], s[0:1], 40")
    e("s_sub_u32 s20, s20, 1")
    e("s_lshl_b32 s24, s21, 2")
    e("s_add_u32 s24, s24, s20")
    e("s_lshl_b32 s25, s24, 12")
    e(f"s_mov_b32 s40, 0x{C_SCALE:08x}")
    e("s_mov_b32 s41, 0")
    e("s_mov_b32 s42, 0")
    e("v_and_b32 v1, 15, v0")
    e("v_lshrrev_b32 v2, 4, v0")
    e("v_lshlrev_b32 v3, 4, v2")
    e("v_lshl_add_u32 v3, v1, 8, v3")
    e("s_mov_b32 s10, 0x1000")
    e("s_mov_b32 s11, 0x20000")
    e("s_waitcnt lgkmcnt(0)")
    e("s_add_u32 s8, s34, s25")
    e("s_addc_u32 s9, s35, 0")
    e("s_and_b32 s9, s9, 0xffff")
    for st in range(4):
        e(f"buffer_load_dwordx4 {r(vQ+st*4,4)}, v3, s[8:11], 0 offen offset:{st*64}")
    e("s_add_u32 s44, s16, s25")
    e("s_addc_u32 s45, s17, 0")
    e("s_and_b32 s45, s45, 0xffff")
    e("s_mov_b32 s46, 0x1000")
    e("s_mov_b32 s47, 0x20000")
    e("s_lshl_b32 s26, s21, 16")
    e("s_add_u32 s48, s30, s26")
    e("s_addc_u32 s49, s31, 0")
    e("s_and_b32 s49, s49, 0xffff")
    e("s_mov_b32 s50, 0x10000")
    e("s_mov_b32 s51, 0x20000")
    e("s_mov_b32 s52, s18")
    e("s_and_b32 s53, s19, 0xffff")
    e("s_mov_b32 s54, 0x100")
    e("s_mov_b32 s55, 0x20000")
    e("s_lshr_b32 s56, s21, 1")
    e("s_lshl_b32 s56, s56, 2")
    e("s_and_b32 s57, s21, 1")
    e("s_lshl_b32 s57, 1, s57")
    e(f"s_mul_i32 s58, s20, {9*1024}")
    e("s_mov_b32 s59, 0xf000")
    e("v_xor_b32 v4, v2, v1")
    e("v_lshlrev_b32 v4, 4, v4")
    e(f"v_lshl_add_u32 {r(vKC)}, v1, 8, v4")
    for st in range(1, 4):
        e(f"v_xor_b32 {r(vKC+st)}, {st*64}, {r(vKC)}")
    e("v_lshrrev_b32 v4, 2, v0")
    e("v_and_b32 v5, 7, v4")
    e("v_lshlrev_b32 v5, 5, v5")
    e("v_lshl_add_u32 v5, v4, 8, v5")
    e("v_and_b32 v6, 3, v0")
    e("v_lshl_add_u32 v5, v6, 3, v5")
    e(f"v_add_u32 {r(vVC)}, 0x10000, v5")
    for db in range(1, 8):
        e(f"v_xor_b32 {r(vVC+db)}, {db*32}, {r(vVC)}")
    for i in range(36):
        e(f"v_mov_b32 {r(vO+i)}, 0")
    for i in range(4):
        e(f"v_mov_b32 {r(vONE+i)}, 0x3f803f80")
    e("v_lshlrev_b32 v7, 4, v0")
    e("v_mov_b32 v6, 0")
    e("s_or_b32 s3, s20, s22")
    e("s_cmp_lg_u32 s3, 0")
    e(f"s_cbranch_scc1 {lab('noclear')}")
    e("s_mov_b64 exec, 1")
    e("buffer_store_dword v6, v6, s[48:51], s59 offen sc1")
    e("v_mov_b32 v5, s57")
    e("s_waitcnt vmcnt(0)")
    e("buffer_atomic_or v5, v6, s[52:55], s56 offen sc1")
    e("s_mov_b64 exec, -1")
    e(f"{lab('noclear')}:")
    next_addr(e, k=True, v=False)
    e("s_waitcnt vmcnt(0)")
    e("s_barrier")
    stamp(e, 1, stamps)
    for kb in range(3):
        for st in range(4):
            k_read(e, kb, st)
    for kb in range(4):
        for st in range(4):
            qk_mfma(e, kb, st)
            if kb == 0:
                k_read(e, 3, st)
    next_addr(e)
    for g in softmax_ops(True):
        for s in g:
            e(s)
    e("s_sub_u32 s29, s23, 1")
    pack_p(e)
    e(f"{lab('loop')}:")
    e("s_barrier")
    for kb in range(3):
        for st in range(4):
            k_read(e, kb, st)
    vlist = [(s, db, h) for s in range(2) for db in range(8) for h in range(2)]
    vi = 0
    for kb in range(4):
        for st in range(4):
            qk_mfma(e, kb, st)
            if kb == 0:
                k_read(e, 3, st)
            else:
                v_read(e, *vlist[vi]); vi += 1
    G = softmax_ops(False)
    pvs = [('L', 0)] + [('O', 0, db) for db in range(8)] + [('L', 1)] + [('O', 1, db) for db in range(8)]
    gi = 0
    for n, op in enumerate(pvs):
        if op[0] == 'L':
            l_mfma(e, op[1])
        else:
            pv_mfma(e, op[1], op[2])
        for _ in range(2):
            if vi < len(vlist):
                v_read(e, *vlist[vi]); vi += 1
        if n >= 2:
            take = 2 if n < 8 else 1
            for _ in range(take):
                if gi < len(G):
                    for s in G[gi]:
                        e(s)
                    gi += 1
    while gi < len(G):
        for s in G[gi]:
            e(s)
        gi += 1
    assert not e.ds
    next_addr(e)
    pack_p(e)
    e(f"s_cbranch_vccz {lab('norescale')}")
    e(f"v_mov_b32 {r(vAL+1)}, {r(vAL)}")
    for i in range(0, 36, 2):
        e(f"v_pk_mul_f32 {r(vO+i,2)}, {r(vO+i,2)}, {r(vAL,2)}")
    e(f"{lab('norescale')}:")
    e("s_sub_u32 s29, s29, 1")
    e("s_cmp_lg_u32 s29, 0")
    e(f"s_cbranch_scc1 {lab('loop')}")
    stamp(e, 2, stamps)
    e("s_cmp_eq_u32 s22, 0")
    e(f"s_cbranch_scc1 {lab('last')}")
    e(f"{lab('poll0')}:")
    e("buffer_load_dword v4, v6, s[52:55], s56 offen sc1")
    e("s_waitcnt vmcnt(0)")
    e("v_readfirstlane_b32 s3, v4")
    e("s_and_b32 s3, s3, s57")
    e(f"s_cbranch_scc0 {lab('poll0')}")
    e(f"{lab('poll1')}:")
    e("buffer_load_dword v4, v6, s[48:51], s59 offen sc1")
    e("s_waitcnt vmcnt(0)")
    e("v_readfirstlane_b32 s3, v4")
    e("s_cmp_eq_u32 s3, 0")
    e(f"s_cbranch_scc1 {lab('poll1')}")
    stamp(e, 3, stamps)
    e("s_add_u32 s3, s58, 0x1000")
    e("s_add_u32 s33, s58, 0x2000")
    e(f"buffer_load_dwordx4 {r(vKF+32,4)}, v7, s[48:51], s33 offen sc1")
    for i in range(8):
        so = "s58" if i < 4 else "s3"
        e(f"buffer_load_dwordx4 {r(vKF+4*i,4)}, v7, s[48:51], {so} offen offset:{(i%4)*1024} sc1")
    e(f"{lab('last')}:")
    e("s_barrier")
    stamp(e, 4, stamps)
    vi = 0
    for _ in range(12):
        v_read(e, *vlist[vi]); vi += 1
    for n, op in enumerate(pvs):
        if op[0] == 'L':
            l_mfma(e, op[1])
        else:
            pv_mfma(e, op[1], op[2])
            for _ in range(2):
                if vi < len(vlist):
                    v_read(e, *vlist[vi]); vi += 1
    assert not e.ds
    e("s_cmp_lg_u32 s22, 0")
    e(f"s_cbranch_scc1 {lab('combine')}")
    e("s_add_u32 s3, s58, 0x1000")
    e("s_add_u32 s33, s58, 0x2000")
    e(f"v_mov_b32 {r(vL+1)}, {r(vMC)}")
    e("s_nop 4")
    e(f"buffer_store_dwordx4 {r(vL,4)}, v7, s[48:51], s33 offen sc1")
    for i in range(8):
        so = "s58" if i < 4 else "s3"
        e(f"buffer_store_dwordx4 {r(vO+4*i,4)}, v7, s[48:51], {so} offen offset:{(i%4)*1024} sc1")
    e("v_mov_b32 v5, 1")
    e("s_waitcnt vmcnt(0)")
    e("s_barrier")
    e("s_cmp_lg_u32 s20, 0")
    e(f"s_cbranch_scc1 {lab('fin')}")
    e("s_mov_b64 exec, 1")
    e("buffer_store_dword v5, v6, s[48:51], s59 offen sc1")
    e("s_mov_b64 exec, -1")
    e(f"s_branch {lab('fin')}")
    e(f"{lab('combine')}:")
    pl, pm = vKF + 32, vKF + 33
    e("s_waitcnt vmcnt(8)")
    e(f"v_max_f32 {r(vT0)}, {r(vMC)}, {r(pm)}")
    e(f"v_sub_f32 {r(vT1)}, {r(vMC)}, {r(vT0)}")
    e(f"v_sub_f32 {r(vT0)}, {r(pm)}, {r(vT0)}")
    e(f"v_exp_f32 {r(vT1)}, {r(vT1)}")
    e(f"v_exp_f32 {r(vT0)}, {r(vT0)}")
    e("v_and_b32 v1, 15, v0")
    e(f"v_mul_f32 {r(vMN)}, {r(vT1)}, {r(vL)}")
    e(f"v_fma_f32 {r(vMN)}, {r(vT0)}, {r(pl)}, {r(vMN)}")
    e(f"v_rcp_f32 {r(vMN)}, {r(vMN)}")
    e("v_lshrrev_b32 v2, 4, v0")
    e(f"v_mul_f32 {r(vAL)}, {r(vT1)}, {r(vMN)}")
    e(f"v_mul_f32 {r(vP)}, {r(vT0)}, {r(vMN)}")
    e(f"v_mov_b32 {r(vAL+1)}, {r(vAL)}")
    e(f"v_mov_b32 {r(vP+1)}, {r(vP)}")
    e("s_lshl_b32 s3, s20, 14")
    e("v_mul_u32_u24 v4, 272, v1")
    e("v_lshl_add_u32 v4, v2, 3, v4")
    e("v_add_u32 v4, s3, v4")
    e("v_mul_u32_u24 v5, 272, v2")
    e("v_lshl_add_u32 v5, v1, 4, v5")
    e("v_add_u32 v5, s3, v5")
    for db in range(8):
        e(f"s_waitcnt vmcnt({7-db})")
        for h in range(2):
            o = r(vO + db*4 + 2*h, 2)
            e(f"v_pk_mul_f32 {o}, {o}, {r(vAL,2)}")
            e(f"v_pk_fma_f32 {o}, {r(vKF+db*4+2*h,2)}, {r(vP,2)}, {o}")
        e(f"v_cvt_pk_bf16_f32 {r(vS+db*2)}, {r(vO+db*4)}, {r(vO+db*4+1)}")
        e(f"v_cvt_pk_bf16_f32 {r(vS+db*2+1)}, {r(vO+db*4+2)}, {r(vO+db*4+3)}")
        e(f"ds_write_b64 v4, {r(vS+db*2,2)} offset:{db*32}")
    e("s_waitcnt lgkmcnt(0)")
    for i in range(4):
        e(f"ds_read_b128 {r(vVF+4*i,4)}, v5 offset:{i*4*272}")
    for i in range(4):
        e(f"s_waitcnt lgkmcnt({3-i})")
        e(f"buffer_store_dwordx4 {r(vVF+4*i,4)}, v7, s[44:47], 0 offen offset:{i*1024} {oflags}")
    e(f"{lab('fin')}:")
    if stamps:
        e("s_waitcnt vmcnt(0)")
        stamp(e, 5, True)
        e("s_lshl_b32 s3, s2, 2")
        e("s_add_u32 s3, s3, s20")
        e("s_lshl_b32 s3, s3, 6")
        e(f"s_add_u32 s3, s3, {STAMP_OFF}")
        e("s_add_u32 s30, s30, s3")
        e("s_addc_u32 s31, s31, 0")
        e("s_cmp_eq_u32 s22, 0")
        e("s_cselect_b32 s70, s68, s70")
        e("s_cselect_b32 s71, s69, s71")
        e("s_getreg_b32 s78, hwreg(HW_REG_XCC_ID)")
        e("s_mov_b32 s79, s22")
        e("s_mov_b32 s76, 0")
        e("s_mov_b32 s77, 0")
        for i in range(16):
            e(f"v_mov_b32 v{16+i}, s{64+i}")
        for i in range(4):
            e(f"global_store_dwordx4 v6, v[{16+4*i}:{19+4*i}], s[30:31] offset:{16*i}")
    e(f"{lab('done')}:")
    e("s_endpgm")
    return dict(name=name, body=e.text(), vgpr=256, sgpr=102, wg=320)

HEADER = open('standalone__gqa_softmax__sampling.s.ref').read().split('; Override')[0]

def final(path, **kw):
    name = 'standalone__gqa_softmax__sampling_kernel'
    k = gen(name, **kw)
    t = HEADER + "; @launch grid=(256,1,1) block=(320,1,1) lds=131072\n" + HEAD + kernel_text(name, k['body'])
    t += '.section .rodata,"a"\n' + descriptor(name, k['vgpr'], k['sgpr'])
    open(path, 'w').write(t)

if __name__ == '__main__':
    exec(open(sys.argv[1]).read())
    ks = [gen(n, **kw) for n, kw in CONFIGS]
    build('attn.s', 'attn.co', ks)
    st = any(kw.get('stamps') for _, kw in CONFIGS)
    spec = ';'.join(f"{n}:256:320:131072" for n, _ in CONFIGS)
    with open('run_attn.sh', 'w') as f:
        f.write(f"timeout 200 ./bench attn.co ${{1:-cold+check}} ${{2:-15}} '{spec}' {'stamps=1024 nw=6 dump=at' if st else ''} $3 $4\n")
    for path, kw in globals().get('FINALS', []):
        final(path, **kw)
```

```python
import sys
from gen import *

def probe(name, a, opa, b, opb, mult, nslots=1024, role=None):
    L = []
    e = L.append
    e("s_cmp_ge_u32 s2, 1")
    e(f"s_cbranch_scc1 {name}_done")
    e("s_load_dwordx2 s[4:5], s[0:1], 40")
    e("s_memrealtime s[20:21]")
    e("v_lshlrev_b32 v1, 6, v0")
    e("s_waitcnt lgkmcnt(0)")
    e(f"s_add_u32 s8, s4, {STAMP_OFF}")
    e("s_addc_u32 s9, s5, 0")
    e("s_and_b32 s9, s9, 0xffff")
    e(f"s_mov_b32 s10, {nslots*64}")
    e("s_mov_b32 s11, 0x20000")
    e("v_mov_b32 v10, 0")
    e("buffer_load_dword v9, v10, s[8:11], 0 offen")
    init = {'min': '0x7fffffff', 'max': '0x80000000', 'add': '0'}
    ins = {'min': 'v_min_i32', 'max': 'v_max_i32', 'add': 'v_add_u32'}
    dsi = {'min': 'ds_min_i32', 'max': 'ds_max_i32', 'add': 'ds_add_u32'}
    e(f"v_mov_b32 v4, {init[opa]}")
    e(f"v_mov_b32 v5, {init[opb]}")
    e("ds_write_b64 v10, v[4:5]")
    e("s_mov_b32 s12, 0")
    e(f"{name}_l:")
    e(f"buffer_load_dword v2, v1, s[8:11], s12 offen offset:{a*8}")
    e(f"buffer_load_dword v3, v1, s[8:11], s12 offen offset:{b*8}")
    e("s_waitcnt vmcnt(0)")
    e("v_sub_u32 v2, v2, v9")
    e("v_sub_u32 v3, v3, v9")
    e(f"{ins[opa]} v4, v4, v2")
    e(f"{ins[opb]} v5, v5, v3")
    e("s_add_u32 s12, s12, 4096")
    e(f"s_cmp_lt_u32 s12, {nslots*64}")
    e(f"s_cbranch_scc1 {name}_l")
    e("s_waitcnt lgkmcnt(0)")
    e(f"{dsi[opa]} v10, v4")
    e(f"{dsi[opb]} v10, v5 offset:4")
    e("s_waitcnt lgkmcnt(0)")
    e("ds_read_b64 v[6:7], v10")
    e("s_waitcnt lgkmcnt(0)")
    e("v_readfirstlane_b32 s14, v6")
    e("v_readfirstlane_b32 s15, v7")
    sh = nslots.bit_length() - 1
    if opa == 'add':
        e(f"s_ashr_i32 s14, s14, {sh}")
    if opb == 'add':
        e(f"s_ashr_i32 s15, s15, {sh}")
    e("s_sub_u32 s16, s15, s14")
    e("s_min_u32 s16, s16, 20000")
    e(f"s_mul_i32 s16, s16, {mult}")
    e(f"{name}_spin:")
    e("s_sleep 8")
    e("s_memrealtime s[22:23]")
    e("s_waitcnt lgkmcnt(0)")
    e("s_sub_u32 s17, s22, s20")
    e("s_cmp_lt_u32 s17, s16")
    e(f"s_cbranch_scc1 {name}_spin")
    e(f"{name}_done:")
    e("s_endpgm")
    return "\n".join(L)

def write(path, kw, a, opa, b, opb, mult, genf=gen, block=320, lds=131072):
    n1, n2 = 'main_kernel', 'probe_kernel'
    k = genf(n1, stamps=True, **kw)
    t = HEADER + f"; @launch kernel={n1} grid=(256,1,1) block=({block},1,1) lds={lds}\n"
    t += f"; @launch kernel={n2} grid=(1,1,1) block=(64,1,1) lds=64\n"
    t += HEAD + kernel_text(n1, k['body']) + kernel_text(n2, probe(n2, a, opa, b, opb, mult))
    t += '.section .rodata,"a"\n' + descriptor(n1, k['vgpr'], k['sgpr'], k.get('accum')) + descriptor(n2, 16, 32)
    open(path, 'w').write(t)

if __name__ == '__main__':
    kw = dict(nA=31, depth=28)
    write('k/p0.s', kw, 0, 'min', 5, 'max', 0)
    write('k/p1.s', kw, 0, 'min', 5, 'max', 20)
    write('k/p2.s', kw, 0, 'min', 1, 'add', 100)
    write('k/p3.s', kw, 0, 'min', 0, 'max', 100)
    write('k/p4.s', kw, 0, 'min', 2, 'add', 20)
    write('k/p5.s', kw, 4, 'add', 5, 'add', 100)
```

```python
from gen import *
def lst(path, order, kw):
    k = gen('main_kernel', **kw)
    t = HEADER
    for o in order:
        if o == 'm':
            t += "; @launch kernel=main_kernel grid=(256,1,1) block=(320,1,1) lds=131072\n"
        else:
            t += "; @launch kernel=tiny_kernel grid=(1,1,1) block=(64,1,1) lds=0\n"
    t += HEAD + kernel_text('main_kernel', k['body']) + kernel_text('tiny_kernel', 's_endpgm')
    t += '.section .rodata,"a"\n' + descriptor('main_kernel', 256, 102) + descriptor('tiny_kernel', 8, 16)
    open(path, 'w').write(t)
kw = dict(nA=31, depth=24)
final('k/v0.s', **kw)
lst('k/v1.s', 'tm', kw)
lst('k/v2.s', 'mt', kw)
lst('k/v3.s', 'mm', kw)
final('k/v4.s', oflags='sc1', **kw)
final('k/v5.s', oflags='nt', **kw)
```
